```python
import torch

def _softmax(x, axis=-1):
    return torch.softmax(x, dim=axis)
def _gelu(x):
    return torch.nn.functional.gelu(x, approximate="tanh")
def _silu(x):
    return torch.nn.functional.silu(x)
def _sigmoid(x):
    return torch.sigmoid(x)
def _layernorm(x, axis=-1, eps=1e-5):
    m = x.mean(dim=axis, keepdim=True)
    v = x.var(dim=axis, keepdim=True, unbiased=False)
    return (x - m) / torch.sqrt(v + eps)
def _scatter_add(tgt, idx, src, axis=0):
    return tgt.clone().index_add_(axis, idx, src)
def _segment_sum(src, seg, n):
    out = torch.zeros((n,) + src.shape[1:], dtype=src.dtype)
    return out.index_add_(0, seg, src)
def _pad(x, pw):
    flat = tuple(v for pair in reversed(pw) for v in pair)
    return torch.nn.functional.pad(x, flat)

kernel_name = 'sequential_preLN__spectral_fnet__glu_gated_glu__prompt'

def setup_inputs():

    _w = (lambda a: (lambda t: t.to(torch.bfloat16) if t.is_floating_point() else t)(torch.as_tensor(a)))
    def _A_setup():
        B, S, D = 1, 2048, 640
        ns = torch.arange(S)[:, None] * torch.arange(S)[None, :]
        nd = torch.arange(D)[:, None] * torch.arange(D)[None, :]
        Ws_re = torch.cos(-2.0 * torch.pi * ns / S).to(float)
        Ws_im = torch.sin(-2.0 * torch.pi * ns / S).to(float)
        Wd_re = torch.cos(-2.0 * torch.pi * nd / D).to(float)
        Wd_im = torch.sin(-2.0 * torch.pi * nd / D).to(float)
        return {
            "x": _w((lambda *s: torch.randn(*s, dtype=torch.bfloat16) * 0.05)(B, S, D)),
            "dft_seq_re": _w(Ws_re),
            "dft_seq_im": _w(Ws_im),
            "dft_hid_re": _w(Wd_re),
            "dft_hid_im": _w(Wd_im),
        }
    _A_in = _A_setup()

    def _B_setup():
        B, S, D, F = 1, 2048, 640, 1728
        return {
            "x": _w((lambda *s: torch.randn(*s, dtype=torch.bfloat16) * 0.05)(B, S, D)),
            "w_gate": _w((lambda *s: torch.randn(*s, dtype=torch.bfloat16) * 1.6)(D, F)),
            "w_up": _w((lambda *s: torch.randn(*s, dtype=torch.bfloat16) * 0.8)(D, F)),
            "w_down": _w((lambda *s: torch.randn(*s, dtype=torch.bfloat16) * 0.8)(F, D)),
        }
    _B_in = _B_setup()

    return {
        "A_x": _A_in["x"],
        "A_dft_seq_re": _A_in["dft_seq_re"],
        "A_dft_seq_im": _A_in["dft_seq_im"],
        "A_dft_hid_re": _A_in["dft_hid_re"],
        "A_dft_hid_im": _A_in["dft_hid_im"],
        "B_x": _B_in["x"],
        "B_w_gate": _B_in["w_gate"],
        "B_w_up": _B_in["w_up"],
        "B_w_down": _B_in["w_down"],
    }

def reference(A_x, A_dft_seq_re, A_dft_seq_im, A_dft_hid_re, A_dft_hid_im, B_x, B_w_gate, B_w_up, B_w_down):
    def _A_ref(x, dft_seq_re, dft_seq_im, dft_hid_re, dft_hid_im):
        a = torch.einsum("bsd,ed->bse", x, dft_hid_re)
        b = torch.einsum("bsd,ed->bse", x, dft_hid_im)
        y = torch.einsum("ts,bse->bte", dft_seq_re, a) - torch.einsum("ts,bse->bte", dft_seq_im, b)
        return y

    def _B_ref(x, w_gate, w_up, w_down):
        g = torch.einsum("bsd,df->bsf", x, w_gate)
        u = torch.einsum("bsd,df->bsf", x, w_up)
        h = _sigmoid(g) * u
        return torch.einsum("bsf,fd->bsd", h, w_down)

    x = A_x
    h = x + _A_ref(_layernorm(x, axis=-1), A_dft_seq_re, A_dft_seq_im, A_dft_hid_re, A_dft_hid_im)
    h2 = h + _B_ref(_layernorm(h, axis=-1), B_w_gate, B_w_up, B_w_down)
    return h2
```

```python
import re

TRANS = ("v_exp_f32", "v_rcp_f32", "v_rsq_f32", "v_sqrt_f32", "v_log_f32", "v_sin_f32", "v_cos_f32")

_REG_RE = re.compile(r"\b([vas])(\d+)\b|\b([vas])\[(\d+):(\d+)\]|\b(vcc|m0|exec)\b")


def regs_of(text):
    out = []
    for m in _REG_RE.finditer(text):
        if m.group(1):
            out.append((m.group(1), int(m.group(2))))
        elif m.group(3):
            for i in range(int(m.group(4)), int(m.group(5)) + 1):
                out.append((m.group(3), i))
        else:
            out.append((m.group(6), 0))
    return out


def split_ops(s):
    ops, depth, cur = [], 0, ""
    for ch in s:
        if ch == "[":
            depth += 1
        elif ch == "]":
            depth -= 1
        if ch == "," and depth == 0:
            ops.append(cur.strip())
            cur = ""
        else:
            cur += ch
    if cur.strip():
        ops.append(cur.strip())
    return ops


class Instr:
    def __init__(self, line):
        self.line = line
        t = line.split(";")[0].strip()
        self.is_label = t.endswith(":")
        self.is_dir = t.startswith(".") or t == ""
        self.mn = t.split()[0] if t else ""
        rest = t[len(self.mn):].strip()
        self.ops = split_ops(rest) if rest else []
        mn = self.mn
        self.mfma = mn.startswith("v_mfma")
        self.valu = mn.startswith("v_") and not self.mfma
        self.trans = any(mn.startswith(x) for x in TRANS)
        self.vmem = mn.startswith("buffer_") or mn.startswith("global_")
        self.ds = mn.startswith("ds_")
        self.salu = mn.startswith("s_")
        self.dpp = ("row_" in t) or ("quad_perm" in t) or ("_dpp" in mn)
        self.permlane = mn.startswith("v_permlane")
        self.readlane = mn.startswith("v_readfirstlane") or mn.startswith("v_readlane")
        self.ldsdma = self.vmem and re.search(r"\blds\b", t) is not None or mn.startswith("global_load_lds")
        self.dst, self.src = [], []
        if self.is_label or self.is_dir:
            return
        o = self.ops
        if self.mfma:
            self.dst = regs_of(o[0])
            self.srcA = regs_of(o[1]) + regs_of(o[2])
            self.srcC = regs_of(o[3])
            self.src = self.srcA + self.srcC
        elif self.valu:
            if self.permlane:
                self.dst = regs_of(o[0]) + regs_of(o[1])
                self.src = list(self.dst)
            else:
                self.dst = regs_of(o[0])
                for x in o[1:]:
                    self.src += regs_of(x.split(" ")[0] if not x.startswith("-") else x)
                if mn.startswith("v_fmac") or mn.startswith("v_dot2c") or mn.startswith("v_pk_fmac"):
                    self.src += self.dst
                if mn.startswith("v_add_co") or mn.startswith("v_sub_co") or mn.startswith("v_addc_co"):
                    self.dst += regs_of(o[1])
                if mn.startswith("v_cndmask") and len(o) == 3:
                    self.src.append(("vcc", 0))
        elif self.vmem:
            is_store = "store" in mn or "atomic" in mn
            if is_store or self.ldsdma:
                for x in o:
                    self.src += regs_of(x)
                if self.ldsdma:
                    self.src.append(("m0", 0))
                self.wide = ("x4" in mn or "x3" in mn) and is_store
                self.data = regs_of(o[0]) if is_store and mn.startswith("buffer_") else (regs_of(o[1]) if is_store else [])
            else:
                self.dst = regs_of(o[0])
                for x in o[1:]:
                    self.src += regs_of(x)
        elif self.ds:
            if "read" in mn or "permute" in mn or "swizzle" in mn:
                self.dst = regs_of(o[0])
                for x in o[1:]:
                    self.src += regs_of(x)
            else:
                for x in o:
                    self.src += regs_of(x)
        elif self.salu:
            if mn.startswith("s_cmp") or mn.startswith("s_cbranch") or mn in ("s_branch", "s_waitcnt", "s_nop", "s_barrier", "s_endpgm", "s_setprio", "s_sleep"):
                for x in o:
                    self.src += regs_of(x)
            else:
                self.dst = regs_of(o[0]) if o else []
                for x in o[1:]:
                    self.src += regs_of(x)


def hazard_pass(lines):
    out = []
    pos = 0
    valu_w = {}
    trans_w = {}
    mfma_w = {}
    mfma_c = {}
    m0_w = -100
    store_d = {}
    dot_w = {}
    for line in lines:
        ins = Instr(line)
        if ins.is_label or ins.is_dir:
            out.append(line)
            continue
        need = 0

        def req(p, n):
            nonlocal need
            if p is not None:
                need = max(need, n - (pos - p - 1))

        if ins.mfma:
            for r in ins.src:
                req(valu_w.get(r), 2)
            for r in ins.srcA:
                req(mfma_w.get(r), 8)
            same = ins.srcC == ins.dst
            for r in ins.srcC:
                if r in mfma_w and not (same and mfma_last_dst.get(r) == tuple(ins.dst)):
                    req(mfma_w.get(r), 6)
        else:
            for r in ins.src + ins.dst:
                if r[0] in "va":
                    req(mfma_w.get(r), 8)
                    if r in dot_w and not (ins.mn == dot_w[r][1] and r in ins.dst and r in regs_of(ins.ops[-1]) and r not in regs_of(ins.ops[1]) + regs_of(ins.ops[2])):
                        req(dot_w[r][0], 3)
            if ins.valu:
                for r in ins.dst:
                    req(mfma_c.get(r), 3)
                    req(store_d.get(r), 2)
                for r in ins.src:
                    if not ins.trans:
                        req(trans_w.get(r), 1)
                    if r[0] in ("s", "vcc"):
                        req(valu_w.get(r), 2)
                    if ins.dpp or ins.permlane:
                        req(valu_w.get(r), 2)
                    if ins.readlane:
                        req(valu_w.get(r), 1)
            else:
                for r in ins.dst:
                    req(store_d.get(r), 1)
            if ins.vmem:
                for r in ins.src:
                    if r[0] == "s":
                        req(valu_w.get(r), 5)
                if ins.ldsdma:
                    req(m0_w, 1)
        if need > 0:
            while need > 0:
                n = min(need, 16)
                out.append("    s_nop %d" % (n - 1))
                pos += n
                need -= n
        out.append(line)
        if ins.mn == "s_nop":
            pos += int(ins.ops[0], 0) + 1
            continue
        if ins.mfma:
            for r in ins.dst:
                mfma_w[r] = pos
                mfma_last_dst[r] = tuple(ins.dst)
                valu_w.pop(r, None)
            for r in ins.srcC:
                mfma_c[r] = pos
        else:
            for r in ins.dst:
                mfma_w.pop(r, None)
                dot_w.pop(r, None)
                if ins.mn.startswith("v_dot"):
                    dot_w[r] = (pos, ins.mn)
                if ins.valu:
                    valu_w[r] = pos
                    if ins.trans:
                        trans_w[r] = pos
                    else:
                        trans_w.pop(r, None)
                else:
                    valu_w.pop(r, None)
                    trans_w.pop(r, None)
                if r == ("m0", 0):
                    m0_w = pos
            if ins.vmem and getattr(ins, "wide", False):
                for r in ins.data:
                    store_d[r] = pos
        pos += 1
    return out


mfma_last_dst = {}


class RegAlloc:
    def __init__(self, kind, start=0, limit=256):
        self.kind, self.next, self.limit = kind, start, limit
        self.hi = start

    def get(self, n=1, align=1):
        while self.next % align:
            self.next += 1
        r = self.next
        self.next += n
        assert self.next <= self.limit, "out of %s regs" % self.kind
        self.hi = max(self.hi, self.next)
        return r


def vr(r, n=1, k="v"):
    return "%s%d" % (k, r) if n == 1 else "%s[%d:%d]" % (k, r, r + n - 1)


def sr(r, n=1):
    return vr(r, n, "s")


class Kernel:
    def __init__(self, name):
        self.name = name
        self.lines = []
        self.nlab = 0

    def __call__(self, s):
        self.lines.append("    " + s)

    def lab(self, base="L"):
        self.nlab += 1
        return "%s_%s%d" % (self.name[:2] + self.name[-9:-7], base, self.nlab)

    def place(self, l):
        self.lines.append(l + ":")

    def comment(self, s):
        self.lines.append("    ; " + s)

    def text(self, nvgpr, nagpr, nsgpr=102):
        body = hazard_pass(self.lines)
        if nagpr:
            acc = (nvgpr + 3) // 4 * 4
            nfv = acc + nagpr
        else:
            acc = (nvgpr + 3) // 4 * 4
            nfv = nvgpr
        hdr = [".text", ".globl %s" % self.name, ".p2align 8", ".type %s,@function" % self.name, "%s:" % self.name]
        desc = ['.section .rodata,"a"', ".p2align 6", ".amdhsa_kernel %s" % self.name,
                "  .amdhsa_next_free_vgpr %d" % nfv, "  .amdhsa_next_free_sgpr %d" % nsgpr,
                "  .amdhsa_accum_offset %d" % acc, "  .amdhsa_group_segment_fixed_size 0",
                "  .amdhsa_kernarg_size 96", "  .amdhsa_user_sgpr_count 2",
                "  .amdhsa_user_sgpr_kernarg_segment_ptr 1", "  .amdhsa_system_sgpr_workgroup_id_x 1",
                ".end_amdhsa_kernel"]
        return "\n".join(hdr + body + desc) + "\n"
```

```python
import sys, os
sys.path.insert(0, os.path.dirname(os.path.abspath(__file__)))
from asmlib import *

NAME = "sequential_preLN__spectral_fnet__glu_gated_glu__prompt"
S, D, F = 2048, 640, 1728
ABP = 4224
WMAT = 640 * 1728 * 2
WS_AB = 0
WS_H = 8 << 20
WS_ST = 12 << 20
WS_CS = 13 << 20
WS_WT = 16 << 20
WS_WDT = WS_WT + 2 * WMAT
WS_HH = 32 << 20
SLOT = 18432
WREG = 2 * SLOT

P_X, P_CR, P_CI, P_DR, P_DI, P_BX, P_WG, P_WU, P_WD, P_OUT, P_DBG, P_WS = [16 + 2 * i for i in range(12)]
SRD_P, SRD_Q, SRD_A, SRD_B, SRD_C, SRD_D = 40, 44, 48, 52, 56, 60
LOG2E = 1.4426950408889634


def f32(x):
    import struct
    return "0x%08x" % struct.unpack("<I", struct.pack("<f", x))[0]


def load_args(k):
    k("s_load_dwordx16 s[16:31], s[0:1], 0")
    k("s_load_dwordx8 s[32:39], s[0:1], 64")


def srd(k, d, ptr, off, nbytes):
    if off:
        k("s_add_u32 s%d, s%d, 0x%x" % (d, ptr, off))
        k("s_addc_u32 s%d, s%d, 0" % (d + 1, ptr + 1))
    else:
        k("s_mov_b32 s%d, s%d" % (d, ptr))
        k("s_mov_b32 s%d, s%d" % (d + 1, ptr + 1))
    k("s_and_b32 s%d, s%d, 0xffff" % (d + 1, d + 1))
    k("s_mov_b32 s%d, 0x%x" % (d + 2, nbytes))
    k("s_mov_b32 s%d, 0x00020000" % (d + 3))


def bf16r(k, dst, src):
    k("v_cvt_pk_bf16_f32 v%d, v%d, v%d" % (dst, src, src))
    k("v_lshlrev_b32 v%d, 16, v%d" % (dst, dst))


def allreduce_g(k, v, tmp):
    k("v_mov_b32 v%d, v%d" % (tmp, v))
    k("v_permlane16_swap_b32 v%d, v%d" % (v, tmp))
    k("v_add_f32 v%d, v%d, v%d" % (v, v, tmp))
    k("v_mov_b32 v%d, v%d" % (tmp, v))
    k("v_permlane32_swap_b32 v%d, v%d" % (v, tmp))
    k("v_add_f32 v%d, v%d, v%d" % (v, v, tmp))


def lane_setup(k, V, s_w):
    L = {}
    for n in ("lane", "c", "g", "l8", "sw", "t0", "t1"):
        L[n] = V.get()
    k("v_readfirstlane_b32 s%d, v0" % s_w)
    k("v_and_b32 v%d, 63, v0" % L["lane"])
    k("s_lshr_b32 s%d, s%d, 6" % (s_w, s_w))
    k("v_and_b32 v%d, 15, v%d" % (L["c"], L["lane"]))
    k("v_lshrrev_b32 v%d, 4, v%d" % (L["g"], L["lane"]))
    k("v_lshrrev_b32 v%d, 3, v%d" % (L["l8"], L["lane"]))
    k("v_and_b32 v%d, 7, v%d" % (L["t0"], L["lane"]))
    k("v_xor_b32 v%d, v%d, v%d" % (L["sw"], L["t0"], L["l8"]))
    k("v_lshlrev_b32 v%d, 4, v%d" % (L["sw"], L["sw"]))
    return L


def rd_base(k, L, dst, ks, s_base):
    k("v_and_b32 v%d, 7, v%d" % (L["t0"], L["c"]))
    k("v_add_u32 v%d, %d, v%d" % (L["t1"], 4 * ks, L["g"]))
    k("v_xor_b32 v%d, v%d, v%d" % (L["t0"], L["t0"], L["t1"]))
    k("v_lshlrev_b32 v%d, 4, v%d" % (L["t0"], L["t0"]))
    k("v_lshl_add_u32 v%d, v%d, 7, v%d" % (L["t0"], L["c"], L["t0"]))
    k("v_add_u32 v%d, s%d, v%d" % (dst, s_base, L["t0"]))


def wave_dma(k, slot, MT, NT, voffP, voffQ, s_k, s_wb, mf=None):
    nd = 2 * (MT + NT)
    for J in range(nd):
        k("s_add_u32 m0, s%d, 0x%x" % (s_wb, slot * SLOT + 1024 * J))
        if mf:
            k(mf.pop(0))
        else:
            k("s_nop 0")
        if J < 2 * MT:
            k("buffer_load_dwordx4 v%d, s[%d:%d], s%d offen lds" % (voffP[J], SRD_P, SRD_P + 3, s_k))
        else:
            k("buffer_load_dwordx4 v%d, s[%d:%d], s%d offen lds" % (voffQ[J - 2 * MT], SRD_Q, SRD_Q + 3, s_k))
    k("s_add_u32 s%d, s%d, 128" % (s_k, s_k))


def wave_core(k, MT, NT, acc, fP, fQ, vRd, voffP, voffQ, s_k, s_rem, s_wb, extra=None, pre=6):
    nd = 2 * (MT + NT)

    def mlist():
        m = []
        for ks in range(2):
            for i in range(MT):
                for j in range(NT):
                    a = vr(acc[i][j], 4)
                    m.append("v_mfma_f32_16x16x32_bf16 %s, %s, %s, %s" % (a, vr(fP[ks][i], 4), vr(fQ[ks][j], 4), a))
            if extra:
                m += extra(ks)
        return m

    Lloop = k.lab("loop")
    Ldone = k.lab("done")
    k.place(Lloop)
    for slot in range(2):
        La = k.lab("wa")
        k("s_cmp_ge_u32 s%d, 2" % s_rem)
        k("s_cbranch_scc1 %s" % La)
        k("s_waitcnt vmcnt(0)")
        k.place(La)
        k("s_waitcnt vmcnt(%d)" % nd)
        for ks in range(2):
            for i in range(MT):
                k("ds_read_b128 %s, v%d offset:%d" % (vr(fP[ks][i], 4), vRd[ks], slot * SLOT + 2048 * i))
            for j in range(NT):
                k("ds_read_b128 %s, v%d offset:%d" % (vr(fQ[ks][j], 4), vRd[ks], slot * SLOT + 2048 * (MT + j)))
        k("s_waitcnt lgkmcnt(%d)" % (MT + NT))
        m = mlist()
        for _ in range(pre):
            k(m.pop(0))
        k("s_waitcnt lgkmcnt(0)")
        Ln = k.lab("nodma")
        Lj = k.lab("join")
        k("s_cmp_ge_u32 s%d, 3" % s_rem)
        k("s_cbranch_scc0 %s" % Ln)
        m2 = list(m)
        wave_dma(k, slot, MT, NT, voffP, voffQ, s_k, s_wb, m2)
        for x in m2:
            k(x)
        k("s_branch %s" % Lj)
        k.place(Ln)
        for x in m:
            k(x)
        k.place(Lj)
        k("s_sub_u32 s%d, s%d, 1" % (s_rem, s_rem))
        k("s_cmp_eq_u32 s%d, 0" % s_rem)
        if slot == 0:
            k("s_cbranch_scc1 %s" % Ldone)
        else:
            k("s_cbranch_scc0 %s" % Lloop)
    k.place(Ldone)
    k("s_nop 7")
    k("s_nop 7")


def gen_k1():
    k = Kernel("k1_kernel")
    V = RegAlloc("v", 1)
    MT, NT = 4, 5
    s_w, s_sb, s_eb, s_k, s_rem, s_wb, s_t0, s_t1, s_t2, s_t3, s_mat, s_sp, s_dp, s_side, s_sgn = range(64, 79)
    Lend = k.lab("end")
    k("s_cmp_ge_u32 s2, 512")
    k("s_cbranch_scc1 %s" % Lend)
    load_args(k)
    L = lane_setup(k, V, s_w)
    k("s_and_b32 s%d, s2, 7" % s_t0)
    k("s_lshr_b32 s%d, s2, 3" % s_t1)
    k("s_and_b32 s%d, s%d, 3" % (s_sb, s_t1))
    k("s_lshl_b32 s%d, s%d, 2" % (s_t0, s_t0))
    k("s_add_u32 s%d, s%d, s%d" % (s_sb, s_sb, s_t0))
    k("s_lshr_b32 s%d, s%d, 2" % (s_eb, s_t1))
    k("s_mul_i32 s%d, s%d, %d" % (s_wb, s_w, WREG))
    acc = [[V.get(4, 4) for j in range(NT)] for i in range(MT)]
    aSum = [V.get(4, 4) for i in range(MT)]
    aGr = [V.get(4, 4) for i in range(MT)]
    aRs = [V.get(4, 4) for j in range(NT)]
    fP = [[V.get(4, 4) for i in range(MT)] for ks in range(2)]
    fQ = [[V.get(4, 4) for j in range(NT)] for ks in range(2)]
    frag0 = fP[0][0]
    ones = V.get(4, 4)
    vRd = [V.get(), V.get()]
    voffP = [V.get() for _ in range(2 * MT)]
    voffQ = [V.get() for _ in range(2 * NT)]
    vS, vD = V.get(), V.get()
    k("s_waitcnt lgkmcnt(0)")
    srd(k, SRD_P, P_X, 0, S * D * 2)
    k("s_cmp_lt_u32 s%d, 8" % s_eb)
    k("s_cselect_b32 s%d, s%d, s%d" % (SRD_Q, P_DR, P_DI))
    k("s_cselect_b32 s%d, s%d, s%d" % (SRD_Q + 1, P_DR + 1, P_DI + 1))
    k("s_cselect_b32 s%d, %s, %s" % (s_sgn, f32(1.0), f32(-1.0)))
    k("s_and_b32 s%d, s%d, 0xffff" % (SRD_Q + 1, SRD_Q + 1))
    k("s_mov_b32 s%d, 0x%x" % (SRD_Q + 2, D * D * 2))
    k("s_mov_b32 s%d, 0x00020000" % (SRD_Q + 3))
    srd(k, SRD_A, P_WS, WS_AB, 1280 * ABP)
    k("s_lshl_b32 s%d, s2, 1" % s_side)
    k("s_add_u32 s%d, s%d, s%d" % (s_side, s_side, s_w))
    Lnoside = k.lab("noside")
    k("s_cmp_ge_u32 s%d, 810" % s_side)
    k("s_cbranch_scc1 %s" % Lnoside)
    k("s_mul_i32 s%d, s%d, 243" % (s_mat, s_side))
    k("s_lshr_b32 s%d, s%d, 16" % (s_mat, s_mat))
    k("s_mul_i32 s%d, s%d, 270" % (s_t0, s_mat))
    k("s_sub_u32 s%d, s%d, s%d" % (s_t0, s_side, s_t0))
    k("s_cmp_eq_u32 s%d, 0" % s_mat)
    k("s_cselect_b32 s%d, s%d, s%d" % (SRD_B, P_WG, P_WU))
    k("s_cselect_b32 s%d, s%d, s%d" % (SRD_B + 1, P_WG + 1, P_WU + 1))
    k("s_cmp_eq_u32 s%d, 2" % s_mat)
    k("s_cselect_b32 s%d, s%d, s%d" % (SRD_B, P_WD, SRD_B))
    k("s_cselect_b32 s%d, s%d, s%d" % (SRD_B + 1, P_WD + 1, SRD_B + 1))
    k("s_mov_b32 s%d, 3456" % s_sp)
    k("s_mov_b32 s%d, 1280" % s_dp)
    k("s_mov_b32 s%d, 2428" % s_t1)
    k("s_cselect_b32 s%d, 1280, s%d" % (s_sp, s_sp))
    k("s_cselect_b32 s%d, 3456, s%d" % (s_dp, s_dp))
    k("s_cselect_b32 s%d, 6554, s%d" % (s_t1, s_t1))
    k("s_cselect_b32 s%d, 10, 27" % s_t2)
    k("s_and_b32 s%d, s%d, 0xffff" % (SRD_B + 1, SRD_B + 1))
    k("s_mov_b32 s%d, 0x%x" % (SRD_B + 2, WMAT))
    k("s_mov_b32 s%d, 0x00020000" % (SRD_B + 3))
    srd(k, SRD_C, P_WS, WS_WT, 3 * WMAT)
    k("s_mul_i32 s%d, s%d, s%d" % (s_t1, s_t0, s_t1))
    k("s_lshr_b32 s%d, s%d, 16" % (s_t1, s_t1))
    k("s_mul_i32 s%d, s%d, s%d" % (s_t2, s_t1, s_t2))
    k("s_sub_u32 s%d, s%d, s%d" % (s_t2, s_t0, s_t2))
    k("s_lshl_b32 s%d, s%d, 6" % (s_t1, s_t1))
    k("s_lshl_b32 s%d, s%d, 6" % (s_t2, s_t2))
    k("v_and_b32 v%d, 7, v%d" % (L["t0"], L["lane"]))
    k("v_lshl_add_u32 v%d, v%d, 3, s%d" % (L["t0"], L["t0"], s_t2))
    k("v_lshl_add_u32 v%d, v%d, 3, s%d" % (L["t1"], L["l8"], s_t1))
    k("v_mul_lo_u32 v%d, v%d, s%d" % (vS, L["t1"], s_sp))
    k("v_lshl_add_u32 v%d, v%d, 1, v%d" % (vS, L["t0"], vS))
    k("v_mul_lo_u32 v%d, v%d, s%d" % (vD, L["t0"], s_dp))
    k("v_lshl_add_u32 v%d, v%d, 1, v%d" % (vD, L["t1"], vD))
    k("s_mul_i32 s%d, s%d, 0x%x" % (s_t3, s_mat, WMAT))
    k("v_add_u32 v%d, s%d, v%d" % (vD, s_t3, vD))
    k("s_mov_b32 s%d, 0" % s_t0)
    tin = frag0
    tout = frag0 + 32
    for i in range(8):
        k("buffer_load_dwordx4 %s, v%d, s[%d:%d], s%d offen" % (vr(tin + 4 * i, 4), vS, SRD_B, SRD_B + 3, s_t0))
        if i < 7:
            k("s_add_u32 s%d, s%d, s%d" % (s_t0, s_t0, s_sp))
    k.place(Lnoside)
    for J in range(2 * MT):
        k("s_lshl_b32 s%d, s%d, 1" % (s_t0, s_w))
        k("s_add_u32 s%d, s%d, %d" % (s_t0, s_t0, J >> 1))
        k("s_and_b32 s%d, s%d, 3" % (s_t0, s_t0))
        k("s_lshl_b32 s%d, s%d, 4" % (s_t0, s_t0))
        k("s_lshl_b32 s%d, s%d, 6" % (s_t1, s_sb))
        k("s_add_u32 s%d, s%d, s%d" % (s_t0, s_t0, s_t1))
        k("s_add_u32 s%d, s%d, %d" % (s_t0, s_t0, 8 * (J & 1)))
        k("v_add_u32 v%d, s%d, v%d" % (L["t0"], s_t0, L["l8"]))
        k("v_mul_u32_u24 v%d, 1280, v%d" % (L["t0"], L["t0"]))
        k("v_add_u32 v%d, v%d, v%d" % (voffP[J], L["t0"], L["sw"]))
    k("s_and_b32 s%d, s%d, 7" % (s_t0, s_eb))
    k("s_mul_i32 s%d, s%d, 80" % (s_t0, s_t0))
    k("v_add_u32 v%d, s%d, v%d" % (L["t0"], s_t0, L["l8"]))
    k("v_mul_u32_u24 v%d, 1280, v%d" % (L["t0"], L["t0"]))
    k("v_add_u32 v%d, v%d, v%d" % (voffQ[0], L["t0"], L["sw"]))
    for J in range(1, 2 * NT):
        k("v_add_u32 v%d, 0x%x, v%d" % (voffQ[J], 8 * J * 1280, voffQ[0]))
    k("s_mul_i32 s%d, s%d, 640" % (s_k, s_w))
    wave_dma(k, 0, MT, NT, voffP, voffQ, s_k, s_wb)
    wave_dma(k, 1, MT, NT, voffP, voffQ, s_k, s_wb)
    k("s_mov_b32 s%d, 5" % s_rem)
    rd_base(k, L, vRd[0], 0, s_wb)
    rd_base(k, L, vRd[1], 1, s_wb)
    Lnoside2 = k.lab("noside")
    k("s_cmp_ge_u32 s%d, 810" % s_side)
    k("s_cbranch_scc1 %s" % Lnoside2)
    k("s_waitcnt vmcnt(36)")
    k("s_mov_b32 s%d, 0x05040100" % s_t1)
    k("s_mov_b32 s%d, 0x07060302" % s_t2)
    for j in range(8):
        for q in range(4):
            k("v_perm_b32 v%d, v%d, v%d, s%d" % (tout + 4 * j + q, tin + 4 * (2 * q + 1) + (j >> 1), tin + 4 * (2 * q) + (j >> 1), s_t1 if j % 2 == 0 else s_t2))
    k("s_mov_b32 s%d, 0" % s_t0)
    for j in range(8):
        k("buffer_store_dwordx4 %s, v%d, s[%d:%d], s%d offen" % (vr(tout + 4 * j, 4), vD, SRD_C, SRD_C + 3, s_t0))
        if j < 7:
            k("s_add_u32 s%d, s%d, s%d" % (s_t0, s_t0, s_dp))
    k.place(Lnoside2)
    for r in range(acc[0][0], aRs[-1] + 4):
        k("v_mov_b32 v%d, 0" % r)
    for r in range(4):
        k("v_mov_b32 v%d, 0x3f803f80" % (ones + r))

    def extra(ks):
        m = []
        for i in range(MT):
            a = vr(aSum[i], 4)
            m.append("v_mfma_f32_16x16x32_bf16 %s, %s, %s, %s" % (a, vr(fP[ks][i], 4), vr(ones, 4), a))
            a = vr(aGr[i], 4)
            m.append("v_mfma_f32_16x16x32_bf16 %s, %s, %s, %s" % (a, vr(fP[ks][i], 4), vr(fP[ks][i], 4), a))
        for j in range(NT):
            a = vr(aRs[j], 4)
            m.append("v_mfma_f32_16x16x32_bf16 %s, %s, %s, %s" % (a, vr(ones, 4), vr(fQ[ks][j], 4), a))
        return m

    wave_core(k, MT, NT, acc, fP, fQ, vRd, voffP, voffQ, s_k, s_rem, s_wb, extra=extra)
    send = [acc[i][j] for i in (2, 3) for j in range(NT)] + [aSum[2], aSum[3], aGr[2], aGr[3]] + aRs
    keep = [acc[i][j] for i in (0, 1) for j in range(NT)] + [aSum[0], aSum[1], aGr[0], aGr[1]] + aRs
    vW, vR = voffP[0], voffP[1]
    k("v_lshlrev_b32 v%d, 4, v%d" % (L["t0"], L["lane"]))
    k("v_add_u32 v%d, s%d, v%d" % (vW, s_wb, L["t0"]))
    k("s_xor_b32 s%d, s%d, 1" % (s_t0, s_w))
    k("s_mul_i32 s%d, s%d, %d" % (s_t0, s_t0, WREG))
    k("v_add_u32 v%d, s%d, v%d" % (vR, s_t0, L["t0"]))
    for n, r in enumerate(send):
        k("ds_write_b128 v%d, %s offset:%d" % (vW, vr(r, 4), 1024 * n))
    k("s_waitcnt lgkmcnt(0)")
    k("s_barrier")
    rb = frag0
    rdst = [rb + 4 * n for n in range(18)] + [ones]
    for n in range(19):
        k("ds_read_b128 %s, v%d offset:%d" % (vr(rdst[n], 4), vR, 1024 * n))
    for n in range(19):
        k("s_waitcnt lgkmcnt(%d)" % min(15, 18 - n))
        for r in range(4):
            k("v_add_f32 v%d, v%d, v%d" % (keep[n] + r, keep[n] + r, rdst[n] + r))
    vb = [rb + i for i in range(4)]
    k("v_mul_u32_u24 v%d, 80, v%d" % (vb[0], L["g"]))
    for r in range(1, 4):
        k("v_add_u32 v%d, %d, v%d" % (vb[r], 4 * r, vb[0]))
    for i in range(2):
        for r in range(4):
            k("ds_bpermute_b32 v%d, v%d, v%d" % (aGr[i] + r, vb[r], aGr[i] + r))
    k("s_waitcnt lgkmcnt(0)")
    t0, t1 = rb + 4, rb + 5
    k("s_mov_b32 s%d, %s" % (s_t0, f32(1.0 / 640)))
    k("s_mov_b32 s%d, %s" % (s_t1, f32(1e-5)))
    for i in range(2):
        for r in range(4):
            m_, g_ = aSum[i] + r, aGr[i] + r
            k("v_mul_f32 v%d, s%d, v%d" % (m_, s_t0, m_))
            k("v_mul_f32 v%d, s%d, v%d" % (g_, s_t0, g_))
            k("v_fma_f32 v%d, -v%d, v%d, v%d" % (g_, m_, m_, g_))
            k("v_max_f32 v%d, 0, v%d" % (g_, g_))
            bf16r(k, m_, m_)
            bf16r(k, g_, g_)
            k("v_add_f32 v%d, s%d, v%d" % (g_, s_t1, g_))
            bf16r(k, g_, g_)
            k("v_sqrt_f32 v%d, v%d" % (g_, g_))
            bf16r(k, g_, g_)
            k("v_rcp_f32 v%d, v%d" % (g_, g_))
            k("v_mul_f32 v%d, s%d, v%d" % (g_, s_sgn, g_))
    vO = [rb + 8, rb + 9]
    for i in range(2):
        k("s_lshl_b32 s%d, s%d, 1" % (s_t0, s_w))
        k("s_add_u32 s%d, s%d, %d" % (s_t0, s_t0, i))
        k("s_and_b32 s%d, s%d, 3" % (s_t0, s_t0))
        k("s_lshl_b32 s%d, s%d, 4" % (s_t0, s_t0))
        k("s_lshl_b32 s%d, s%d, 6" % (s_t1, s_sb))
        k("s_add_u32 s%d, s%d, s%d" % (s_t0, s_t0, s_t1))
        k("s_lshl_b32 s%d, s%d, 1" % (s_t0, s_t0))
        k("s_mul_i32 s%d, s%d, %d" % (s_t1, s_eb, 80 * ABP))
        k("s_add_u32 s%d, s%d, s%d" % (s_t0, s_t0, s_t1))
        k("v_mul_u32_u24 v%d, %d, v%d" % (t0, ABP, L["c"]))
        k("v_lshl_add_u32 v%d, v%d, 3, v%d" % (t0, L["g"], t0))
        k("v_add_u32 v%d, s%d, v%d" % (vO[i], s_t0, t0))
    pk = rb + 12
    n = 0
    for j in range(NT):
        k("s_mov_b32 s%d, 0x%x" % (s_t2, 16 * j * ABP))
        for i in range(2):
            a = acc[i][j]
            for r in range(4):
                k("v_fma_f32 v%d, -v%d, v%d, v%d" % (a + r, aSum[i] + r, aRs[j], a + r))
                k("v_mul_f32 v%d, v%d, v%d" % (a + r, a + r, aGr[i] + r))
            p = pk + 2 * n
            n += 1
            k("v_cvt_pk_bf16_f32 v%d, v%d, v%d" % (p, a, a + 1))
            k("v_cvt_pk_bf16_f32 v%d, v%d, v%d" % (p + 1, a + 2, a + 3))
            k("buffer_store_dwordx2 %s, v%d, s[%d:%d], s%d offen" % (vr(p, 2), vO[i], SRD_A, SRD_A + 3, s_t2))
    k.place(Lend)
    k("s_endpgm")
    return k.text(V.hi, 0)


def gen_k24(which):
    k2 = which == 2
    k = Kernel("k2_kernel" if k2 else "k4_kernel")
    V = RegAlloc("v", 1)
    MT, NT = 5, 4
    s_w, s_tb, s_nb, s_k, s_rem, s_wb, s_t0, s_t1, s_t2, s_t3, s_part = range(64, 75)
    Lend = k.lab("end")
    k("s_cmp_ge_u32 s2, 256")
    k("s_cbranch_scc1 %s" % Lend)
    load_args(k)
    L = lane_setup(k, V, s_w)
    k("s_and_b32 s%d, s2, 7" % s_t0)
    k("s_lshr_b32 s%d, s2, 3" % s_t1)
    k("s_lshr_b32 s%d, s%d, 1" % (s_tb, s_t0))
    k("s_lshl_b32 s%d, s%d, 3" % (s_tb, s_tb))
    k("s_and_b32 s%d, s%d, 7" % (s_t2, s_t1))
    k("s_add_u32 s%d, s%d, s%d" % (s_tb, s_tb, s_t2))
    k("s_and_b32 s%d, s%d, 1" % (s_nb, s_t0))
    k("s_lshl_b32 s%d, s%d, 2" % (s_nb, s_nb))
    k("s_lshr_b32 s%d, s%d, 3" % (s_t2, s_t1))
    k("s_add_u32 s%d, s%d, s%d" % (s_nb, s_nb, s_t2))
    k("s_mul_i32 s%d, s%d, %d" % (s_wb, s_w, WREG))
    acc = [[V.get(4, 4) for j in range(NT)] for i in range(MT)]
    fP = [[V.get(4, 4) for i in range(MT)] for ks in range(2)]
    fQ = [[V.get(4, 4) for j in range(NT)] for ks in range(2)]
    frag0 = fP[0][0]
    vRd = [V.get(), V.get()]
    voffP = [V.get() for _ in range(2 * MT)]
    voffQ = [V.get() for _ in range(2 * NT)]
    vres = V.get(10, 2)
    vEp = V.get()
    vCs = V.get()
    k("s_waitcnt lgkmcnt(0)")
    if k2:
        PP, QP = ABP, 4096
        srd(k, SRD_P, P_WS, WS_AB, 1280 * ABP)
        k("s_lshr_b32 s%d, s%d, 1" % (s_part, s_w))
        k("s_cmp_eq_u32 s%d, 0" % s_part)
        k("s_cselect_b32 s%d, s%d, s%d" % (SRD_Q, P_CR, P_CI))
        k("s_cselect_b32 s%d, s%d, s%d" % (SRD_Q + 1, P_CR + 1, P_CI + 1))
        k("s_and_b32 s%d, s%d, 0xffff" % (SRD_Q + 1, SRD_Q + 1))
        k("s_mov_b32 s%d, 0x%x" % (SRD_Q + 2, S * S * 2))
        k("s_mov_b32 s%d, 0x00020000" % (SRD_Q + 3))
        srd(k, SRD_A, P_X, 0, S * D * 2)
        srd(k, SRD_B, P_WS, WS_H, S * D * 2)
        srd(k, SRD_C, P_WS, WS_ST, S * 64)
        srd(k, SRD_D, P_WS, WS_WT, 2 * WMAT)
    else:
        PP, QP = 3456, 3456
        srd(k, SRD_P, P_WS, WS_WDT, WMAT)
        srd(k, SRD_Q, P_WS, WS_HH, S * F * 2)
        srd(k, SRD_A, P_WS, WS_H, S * D * 2)
        srd(k, SRD_B, P_OUT, 0, S * D * 2)
    k("s_lshl_b32 s%d, s%d, 6" % (s_t0, s_tb))
    k("s_lshl_b32 s%d, s%d, 4" % (s_t1, s_w))
    k("s_add_u32 s%d, s%d, s%d" % (s_t0, s_t0, s_t1))
    k("v_add_u32 v%d, s%d, v%d" % (L["t0"], s_t0, L["c"]))
    k("v_mul_u32_u24 v%d, 1280, v%d" % (vEp, L["t0"]))
    k("v_lshl_add_u32 v%d, v%d, 3, v%d" % (vEp, L["g"], vEp))
    k("s_mul_i32 s%d, s%d, 160" % (s_t1, s_nb))
    k("v_add_u32 v%d, s%d, v%d" % (vEp, s_t1, vEp))
    for i in range(MT):
        k("buffer_load_dwordx2 %s, v%d, s[%d:%d], 0 offen offset:%d" % (vr(vres + 2 * i, 2), vEp, SRD_A, SRD_A + 3, 32 * i))
    nside = 0
    if k2:
        Lns = k.lab("noside")
        k("s_cmp_ge_u32 s2, 216")
        k("s_cbranch_scc1 %s" % Lns)
        k("s_lshl_b32 s%d, s2, 4" % s_t0)
        k("s_lshl_b32 s%d, s%d, 2" % (s_t1, s_w))
        k("s_add_u32 s%d, s%d, s%d" % (s_t0, s_t0, s_t1))
        k("v_add_u32 v%d, s%d, v%d" % (vCs, s_t0, L["g"]))
        k("v_mul_u32_u24 v%d, 1280, v%d" % (L["t0"], vCs))
        k("v_lshl_add_u32 v%d, v%d, 4, v%d" % (L["t0"], L["c"], L["t0"]))
        for q in range(5):
            k("buffer_load_dwordx4 %s, v%d, s[%d:%d], 0 offen offset:%d" % (vr(frag0 + 4 * q, 4), L["t0"], SRD_D, SRD_D + 3, 256 * q))
        k.place(Lns)
    if k2:
        k("s_mul_i32 s%d, s%d, 640" % (s_t0, s_part))
        k("s_mul_i32 s%d, s%d, 80" % (s_t1, s_nb))
        k("s_add_u32 s%d, s%d, s%d" % (s_t0, s_t0, s_t1))
    else:
        k("s_mul_i32 s%d, s%d, 80" % (s_t0, s_nb))
    k("v_add_u32 v%d, s%d, v%d" % (L["t0"], s_t0, L["l8"]))
    k("v_mul_u32_u24 v%d, %d, v%d" % (L["t0"], PP, L["t0"]))
    k("v_add_u32 v%d, v%d, v%d" % (voffP[0], L["t0"], L["sw"]))
    for J in range(1, 2 * MT):
        k("v_add_u32 v%d, 0x%x, v%d" % (voffP[J], 8 * J * PP, voffP[0]))
    for J in range(2 * NT):
        k("s_add_u32 s%d, s%d, %d" % (s_t0, s_w, J >> 1))
        k("s_and_b32 s%d, s%d, 3" % (s_t0, s_t0))
        k("s_lshl_b32 s%d, s%d, 4" % (s_t0, s_t0))
        k("s_lshl_b32 s%d, s%d, 6" % (s_t1, s_tb))
        k("s_add_u32 s%d, s%d, s%d" % (s_t0, s_t0, s_t1))
        k("s_add_u32 s%d, s%d, %d" % (s_t0, s_t0, 8 * (J & 1)))
        k("v_add_u32 v%d, s%d, v%d" % (L["t0"], s_t0, L["l8"]))
        k("v_mul_u32_u24 v%d, %d, v%d" % (L["t0"], QP, L["t0"]))
        k("v_add_u32 v%d, v%d, v%d" % (voffQ[J], L["t0"], L["sw"]))
    if k2:
        k("s_and_b32 s%d, s%d, 1" % (s_k, s_w))
        k("s_lshl_b32 s%d, s%d, 11" % (s_k, s_k))
        k("s_mov_b32 s%d, 16" % s_rem)
    else:
        k("s_mul_i32 s%d, s%d, %d" % (s_k, s_w, 7 * 128))
        k("s_cmp_eq_u32 s%d, 3" % s_w)
        k("s_cselect_b32 s%d, 6, 7" % s_rem)
    wave_dma(k, 0, MT, NT, voffP, voffQ, s_k, s_wb)
    wave_dma(k, 1, MT, NT, voffP, voffQ, s_k, s_wb)
    rd_base(k, L, vRd[0], 0, s_wb)
    rd_base(k, L, vRd[1], 1, s_wb)
    if k2:
        Lns = k.lab("noside")
        k("s_cmp_ge_u32 s2, 216")
        k("s_cbranch_scc1 %s" % Lns)
        k("s_waitcnt vmcnt(36)")
        a0 = acc[0][0]
        k("s_mov_b32 s%d, 0x3f803f80" % s_t0)
        k("v_mov_b32 v%d, 0" % a0)
        k("v_mov_b32 v%d, 0" % (a0 + 1))
        for q in range(20):
            k("v_dot2_f32_bf16 v%d, v%d, s%d, v%d" % (a0 + (q & 1), frag0 + q, s_t0, a0 + (q & 1)))
        k("v_add_f32 v%d, v%d, v%d" % (a0, a0, a0 + 1))
        for sh in (8, 4, 2, 1):
            k("v_add_f32_dpp v%d, v%d, v%d row_ror:%d row_mask:0xf bank_mask:0xf" % (a0 + 1, a0, a0, sh))
            k("v_mov_b32 v%d, v%d" % (a0, a0 + 1))
        srd(k, SRD_D, P_WS, WS_CS, 3456 * 4)
        k("v_lshlrev_b32 v%d, 2, v%d" % (vCs, vCs))
        k("buffer_store_dword v%d, v%d, s[%d:%d], 0 offen" % (a0, vCs, SRD_D, SRD_D + 3))
        k("s_nop 1")
        k.place(Lns)
    for r in range(acc[0][0], acc[-1][-1] + 4):
        k("v_mov_b32 v%d, 0" % r)
    wave_core(k, MT, NT, acc, fP, fQ, vRd, voffP, voffQ, s_k, s_rem, s_wb)
    vW = voffP[0]
    vR = [voffP[1], voffP[2], voffP[3]]
    k("v_lshlrev_b32 v%d, 4, v%d" % (L["t0"], L["lane"]))
    k("v_add_u32 v%d, s%d, v%d" % (vW, s_wb, L["t0"]))
    for d in range(1, 4):
        k("s_sub_u32 s%d, s%d, %d" % (s_t0, s_w, d))
        k("s_and_b32 s%d, s%d, 3" % (s_t0, s_t0))
        k("s_mul_i32 s%d, s%d, %d" % (s_t0, s_t0, WREG))
        k("v_add_u32 v%d, s%d, v%d" % (vR[d - 1], s_t0, L["t0"]))
    for d in range(1, 4):
        for i in range(MT):
            k("ds_write_b128 v%d, %s offset:%d" % (vW, vr(acc[i][d], 4), 1024 * (5 * d + i)))
    k("s_waitcnt lgkmcnt(0)")
    k("s_barrier")
    n = 0
    for d in range(1, 4):
        for i in range(MT):
            k("ds_read_b128 %s, v%d offset:%d" % (vr(frag0 + 4 * n, 4), vR[d - 1], 1024 * (5 * d + i)))
            n += 1
    n = 0
    for d in range(1, 4):
        for i in range(MT):
            k("s_waitcnt lgkmcnt(%d)" % (14 - n))
            for r in range(4):
                k("v_add_f32 v%d, v%d, v%d" % (acc[i][0] + r, acc[i][0] + r, frag0 + 4 * n + r))
            n += 1
    t0 = acc[0][1]
    k("s_mov_b32 s%d, 0xffff0000" % s_t0)
    pk = acc[0][2]
    pk = frag0
    for i in range(MT):
        a = acc[i][0]
        for h in range(2):
            k("v_lshlrev_b32 v%d, 16, v%d" % (t0, vres + 2 * i + h))
            k("v_add_f32 v%d, v%d, v%d" % (a + 2 * h, a + 2 * h, t0))
            k("v_and_b32 v%d, s%d, v%d" % (t0, s_t0, vres + 2 * i + h))
            k("v_add_f32 v%d, v%d, v%d" % (a + 2 * h + 1, a + 2 * h + 1, t0))
            k("v_cvt_pk_bf16_f32 v%d, v%d, v%d" % (pk + 2 * i + h, a + 2 * h, a + 2 * h + 1))
        k("buffer_store_dwordx2 %s, v%d, s[%d:%d], 0 offen offset:%d" % (vr(pk + 2 * i, 2), vEp, SRD_B, SRD_B + 3, 32 * i))
    if k2:
        sS, sM, tmp = acc[0][1], acc[0][1] + 1, acc[0][1] + 2
        for i in range(MT):
            a = acc[i][0]
            for h in range(2):
                k("v_lshlrev_b32 v%d, 16, v%d" % (a + 2 * h, pk + 2 * i + h))
                k("v_and_b32 v%d, s%d, v%d" % (a + 2 * h + 1, s_t0, pk + 2 * i + h))
        vals = [acc[i][0] + r for i in range(MT) for r in range(4)]
        k("v_add_f32 v%d, v%d, v%d" % (sS, vals[0], vals[1]))
        for x in vals[2:]:
            k("v_add_f32 v%d, v%d, v%d" % (sS, sS, x))
        allreduce_g(k, sS, tmp)
        k("v_mul_f32 v%d, %s, v%d" % (tmp, f32(1.0 / 80), sS))
        for x in vals:
            k("v_sub_f32 v%d, v%d, v%d" % (x, x, tmp))
        k("v_mul_f32 v%d, v%d, v%d" % (sM, vals[0], vals[0]))
        for x in vals[1:]:
            k("v_fmac_f32 v%d, v%d, v%d" % (sM, x, x))
        allreduce_g(k, sM, tmp)
        k("s_lshl_b32 s%d, s%d, 6" % (s_t0, s_tb))
        k("s_lshl_b32 s%d, s%d, 4" % (s_t1, s_w))
        k("s_add_u32 s%d, s%d, s%d" % (s_t0, s_t0, s_t1))
        k("s_lshl_b32 s%d, s%d, 6" % (s_t0, s_t0))
        k("s_lshl_b32 s%d, s%d, 3" % (s_t1, s_nb))
        k("s_add_u32 s%d, s%d, s%d" % (s_t0, s_t0, s_t1))
        k("v_lshlrev_b32 v%d, 6, v%d" % (tmp, L["c"]))
        k("v_add_u32 v%d, s%d, v%d" % (tmp, s_t0, tmp))
        k("s_mov_b64 exec, 0xffff")
        k("buffer_store_dwordx2 %s, v%d, s[%d:%d], 0 offen" % (vr(sS, 2), tmp, SRD_C, SRD_C + 3))
    k.place(Lend)
    k("s_endpgm")
    return k.text(V.hi, 0)


K3_SLOT = 45056
K3_HOFF = 28672


def gen_k3():
    k = Kernel("k3_kernel")
    V = RegAlloc("v", 1)
    A = RegAlloc("a", 0)
    NST = 10
    s_w, s_tb, s_fb, s_k, s_t0, s_t1, s_t2, s_t3, s_wt, s_wf, s_f0, s_wd, s_hd = range(64, 77)
    s_msk = 78
    Lend = k.lab("end")
    k("s_cmp_ge_u32 s2, 256")
    k("s_cbranch_scc1 %s" % Lend)
    load_args(k)
    L = lane_setup(k, V, s_w)
    k("s_and_b32 s%d, s2, 7" % s_t0)
    k("s_lshr_b32 s%d, s2, 3" % s_t1)
    k("s_and_b32 s%d, s%d, 1" % (s_tb, s_t0))
    k("s_lshl_b32 s%d, s%d, 3" % (s_tb, s_tb))
    k("s_and_b32 s%d, s%d, 7" % (s_t2, s_t1))
    k("s_add_u32 s%d, s%d, s%d" % (s_tb, s_tb, s_t2))
    k("s_lshr_b32 s%d, s%d, 1" % (s_fb, s_t0))
    k("s_lshl_b32 s%d, s%d, 2" % (s_fb, s_fb))
    k("s_lshr_b32 s%d, s%d, 3" % (s_t2, s_t1))
    k("s_add_u32 s%d, s%d, s%d" % (s_fb, s_fb, s_t2))
    k("s_mul_i32 s%d, s%d, 112" % (s_f0, s_fb))
    k("s_and_b32 s%d, s%d, 1" % (s_wt, s_w))
    k("s_lshr_b32 s%d, s%d, 1" % (s_wf, s_w))
    acc = [[V.get(4, 4) for j in range(4)] for i in range(7)]
    fA = [[A.get(4, 4) for i in range(7)] for ks in range(2)]
    fB = [[A.get(4, 4) for j in range(4)] for ks in range(2)]
    voffW = [V.get() for _ in range(7)]
    voffH = [V.get() for _ in range(4)]
    rdA = [[V.get() for ks in range(2)] for sl in range(3)]
    rdBl = [[V.get() for ks in range(2)] for sl in range(3)]
    rdBh = [[V.get() for ks in range(2)] for sl in range(3)]
    vcs = [V.get(4, 4) for i in range(7)]
    vst = [V.get(4, 4) for j in range(4)]
    vmb = [V.get() for j in range(4)]
    vri = [V.get() for j in range(4)]
    vnri = [V.get() for j in range(4)]
    vsc6 = [V.get() for j in range(4)]
    tmp = [V.get(4, 4) for _ in range(4)]
    k("s_waitcnt lgkmcnt(0)")
    srd(k, SRD_P, P_WS, WS_WT, 3 * WMAT)
    srd(k, SRD_Q, P_WS, WS_H, S * D * 2)
    srd(k, SRD_A, P_WS, WS_ST, S * 64)
    srd(k, SRD_B, P_WS, WS_CS, 3456 * 4 + 1024)
    srd(k, SRD_C, P_WS, WS_HH, S * F * 2)
    vT = [tmp[0] + j for j in range(4)]
    for j in range(4):
        k("s_lshl_b32 s%d, s%d, 1" % (s_t0, s_wf))
        k("s_add_u32 s%d, s%d, %d" % (s_t0, s_t0, j))
        k("s_and_b32 s%d, s%d, 3" % (s_t0, s_t0))
        k("s_lshl_b32 s%d, s%d, 4" % (s_t0, s_t0))
        k("s_lshl_b32 s%d, s%d, 7" % (s_t1, s_tb))
        k("s_add_u32 s%d, s%d, s%d" % (s_t0, s_t0, s_t1))
        k("s_lshl_b32 s%d, s%d, 6" % (s_t1, s_wt))
        k("s_add_u32 s%d, s%d, s%d" % (s_t0, s_t0, s_t1))
        k("v_add_u32 v%d, s%d, v%d" % (vT[j], s_t0, L["c"]))
        k("v_lshlrev_b32 v%d, 6, v%d" % (L["t0"], vT[j]))
        k("v_lshl_add_u32 v%d, v%d, 4, v%d" % (L["t0"], L["g"], L["t0"]))
        k("buffer_load_dwordx4 %s, v%d, s[%d:%d], 0 offen" % (vr(vst[j], 4), L["t0"], SRD_A, SRD_A + 3))
    k("s_lshl_b32 s%d, s%d, 6" % (s_t0, s_wf))
    k("s_add_u32 s%d, s%d, s%d" % (s_t0, s_t0, s_f0))
    k("v_lshl_add_u32 v%d, v%d, 2, s%d" % (L["t0"], L["g"], s_t0))
    k("v_lshlrev_b32 v%d, 2, v%d" % (L["t0"], L["t0"]))
    k("s_mov_b32 s%d, %d" % (s_t1, 1728 * 4))
    for i in range(6):
        if i & 1:
            k("buffer_load_dwordx4 %s, v%d, s[%d:%d], s%d offen offset:%d" % (vr(vcs[i], 4), L["t0"], SRD_B, SRD_B + 3, s_t1, 64 * (i >> 1)))
        else:
            k("buffer_load_dwordx4 %s, v%d, s[%d:%d], 0 offen offset:%d" % (vr(vcs[i], 4), L["t0"], SRD_B, SRD_B + 3, 64 * (i >> 1)))
    k("s_mul_i32 s%d, s%d, 1728" % (s_t0, s_wf))
    k("s_add_u32 s%d, s%d, s%d" % (s_t0, s_t0, s_f0))
    k("s_add_u32 s%d, s%d, 48" % (s_t0, s_t0))
    k("v_lshl_add_u32 v%d, v%d, 2, s%d" % (L["t0"], L["g"], s_t0))
    k("v_lshlrev_b32 v%d, 2, v%d" % (L["t0"], L["t0"]))
    k("buffer_load_dwordx4 %s, v%d, s[%d:%d], 0 offen" % (vr(vcs[6], 4), L["t0"], SRD_B, SRD_B + 3))
    k("s_lshl_b32 s%d, s%d, 3" % (s_t0, s_wt))
    k("s_add_u32 s%d, s%d, s%d" % (s_t0, s_t0, s_f0))
    k("s_lshl_b32 s%d, s%d, 6" % (s_t1, s_wf))
    k("s_add_u32 s%d, s%d, s%d" % (s_t1, s_t1, s_t0))
    k("v_add_u32 v%d, s%d, v%d" % (L["t0"], s_t1, L["l8"]))
    k("v_mul_u32_u24 v%d, 1280, v%d" % (L["t0"], L["t0"]))
    k("v_add_u32 v%d, v%d, v%d" % (voffW[0], L["t0"], L["sw"]))
    for i in range(1, 6):
        k("v_add_u32 v%d, 0x%x, v%d" % (voffW[i], (16 * (i >> 1) + 1728 * (i & 1)) * 1280, voffW[0]))
    k("s_mul_i32 s%d, s%d, 1728" % (s_t1, s_wf))
    k("s_add_u32 s%d, s%d, s%d" % (s_t1, s_t1, s_t0))
    k("s_add_u32 s%d, s%d, 48" % (s_t1, s_t1))
    k("v_add_u32 v%d, s%d, v%d" % (L["t0"], s_t1, L["l8"]))
    k("v_mul_u32_u24 v%d, 1280, v%d" % (L["t0"], L["t0"]))
    k("v_add_u32 v%d, v%d, v%d" % (voffW[6], L["t0"], L["sw"]))
    k("s_lshl_b32 s%d, s%d, 7" % (s_t0, s_tb))
    k("s_lshl_b32 s%d, s%d, 5" % (s_t1, s_w))
    k("s_add_u32 s%d, s%d, s%d" % (s_t0, s_t0, s_t1))
    k("v_add_u32 v%d, s%d, v%d" % (L["t0"], s_t0, L["l8"]))
    k("v_mul_u32_u24 v%d, 1280, v%d" % (L["t0"], L["t0"]))
    k("v_add_u32 v%d, v%d, v%d" % (voffH[0], L["t0"], L["sw"]))
    for i in range(1, 4):
        k("v_add_u32 v%d, 0x%x, v%d" % (voffH[i], 8 * i * 1280, voffH[0]))
    k("s_mul_i32 s%d, s%d, %d" % (s_wd, s_wf, 7 * 2048))
    k("s_lshl_b32 s%d, s%d, 10" % (s_t0, s_wt))
    k("s_add_u32 s%d, s%d, s%d" % (s_wd, s_wd, s_t0))
    k("s_lshl_b32 s%d, s%d, 12" % (s_hd, s_w))
    k("s_add_u32 s%d, s%d, %d" % (s_hd, s_hd, K3_HOFF))
    k("s_mov_b32 s%d, 0" % s_k)

    def dma(st, mf=None):
        sl = st % 3
        for i in range(11):
            if i < 7:
                k("s_add_u32 m0, s%d, 0x%x" % (s_wd, sl * K3_SLOT + 2048 * i))
            else:
                k("s_add_u32 m0, s%d, 0x%x" % (s_hd, sl * K3_SLOT + 1024 * (i - 7)))
            if mf:
                k(mf.pop(0))
                if mf:
                    k(mf.pop(0))
            else:
                k("s_nop 0")
            if i < 7:
                k("buffer_load_dwordx4 v%d, s[%d:%d], s%d offen lds" % (voffW[i], SRD_P, SRD_P + 3, s_k))
            else:
                k("buffer_load_dwordx4 v%d, s[%d:%d], s%d offen lds" % (voffH[i - 7], SRD_Q, SRD_Q + 3, s_k))
        k("s_add_u32 s%d, s%d, 128" % (s_k, s_k))

    for st in range(3):
        dma(st)
    for sl in range(3):
        for ks in range(2):
            k("s_mul_i32 s%d, s%d, %d" % (s_t0, s_wf, 7 * 2048))
            k("s_add_u32 s%d, s%d, %d" % (s_t0, s_t0, sl * K3_SLOT))
            rd_base(k, L, rdA[sl][ks], ks, s_t0)
            k("s_lshl_b32 s%d, s%d, 13" % (s_t0, s_wt))
            k("s_add_u32 s%d, s%d, %d" % (s_t0, s_t0, sl * K3_SLOT + K3_HOFF))
            k("s_lshl_b32 s%d, s%d, 12" % (s_t1, s_wf))
            k("s_add_u32 s%d, s%d, s%d" % (s_t2, s_t0, s_t1))
            rd_base(k, L, rdBl[sl][ks], ks, s_t2)
            k("s_sub_u32 s%d, s%d, s%d" % (s_t2, s_t0, s_t1))
            k("s_add_u32 s%d, s%d, 4096" % (s_t2, s_t2))
            rd_base(k, L, rdBh[sl][ks], ks, s_t2)
    for i in range(7):
        for j in range(4):
            for r in range(4):
                k("v_mov_b32 v%d, 0" % (acc[i][j] + r))
    k("s_waitcnt vmcnt(33)")
    t0, t1, t2 = tmp[1], tmp[1] + 1, tmp[1] + 2
    k("s_mov_b32 s%d, %s" % (s_t0, f32(1.0 / 640)))
    k("s_mov_b32 s%d, %s" % (s_t1, f32(1.0 / 80)))
    k("s_mov_b32 s%d, %s" % (s_t2, f32(80.0)))
    k("s_mov_b32 s%d, %s" % (s_t3, f32(1e-5)))
    k("s_cmp_eq_u32 s%d, 1" % s_wf)
    k("s_cselect_b64 s[%d:%d], -1, 0" % (s_msk, s_msk + 1))
    for j in range(4):
        s0, m0_, s1, m1_ = vst[j], vst[j] + 1, vst[j] + 2, vst[j] + 3
        k("v_add_f32 v%d, v%d, v%d" % (t0, s0, s1))
        allreduce_g(k, t0, t1)
        k("v_mul_f32 v%d, s%d, v%d" % (t0, s_t0, t0))
        k("v_fma_f32 v%d, v%d, s%d, -v%d" % (s0, s0, s_t1, t0))
        k("v_fma_f32 v%d, v%d, s%d, -v%d" % (s1, s1, s_t1, t0))
        k("v_mul_f32 v%d, v%d, v%d" % (s0, s0, s0))
        k("v_fmac_f32 v%d, v%d, v%d" % (s0, s1, s1))
        k("v_add_f32 v%d, v%d, v%d" % (m0_, m0_, m1_))
        k("v_fma_f32 v%d, v%d, s%d, v%d" % (m0_, s0, s_t2, m0_))
        allreduce_g(k, m0_, t1)
        k("v_mul_f32 v%d, s%d, v%d" % (m0_, s_t0, m0_))
        bf16r(k, vmb[j], t0)
        bf16r(k, m0_, m0_)
        k("v_add_f32 v%d, s%d, v%d" % (m0_, s_t3, m0_))
        bf16r(k, m0_, m0_)
        k("v_sqrt_f32 v%d, v%d" % (m0_, m0_))
        bf16r(k, m0_, m0_)
        k("v_rcp_f32 v%d, v%d" % (vri[j], m0_))
        k("v_mul_f32 v%d, %s, v%d" % (vnri[j], f32(-LOG2E), vri[j]))
        k("v_cndmask_b32 v%d, v%d, v%d, s[%d:%d]" % (vsc6[j], vnri[j], vri[j], s_msk, s_msk + 1))

    def reads(st, ks):
        sl = st % 3
        for i in range(7):
            k("ds_read_b128 %s, v%d offset:%d" % (vr(fA[ks][i], 4, "a"), rdA[sl][ks], 2048 * i))
        for j in range(4):
            b = rdBl if j < 2 else rdBh
            k("ds_read_b128 %s, v%d offset:%d" % (vr(fB[ks][j], 4, "a"), b[sl][ks], 2048 * (j & 1)))

    def mlist(ks):
        m = []
        for i in range(7):
            for j in range(4):
                a = vr(acc[i][j], 4)
                m.append("v_mfma_f32_16x16x32_bf16 %s, %s, %s, %s" % (a, vr(fA[ks][i], 4, "a"), vr(fB[ks][j], 4, "a"), a))
        return m

    k("s_waitcnt vmcnt(22)")
    k("s_barrier")
    reads(0, 0)
    for st in range(NST):
        reads(st, 1)
        k("s_waitcnt lgkmcnt(11)")
        for x in mlist(0):
            k(x)
        k("s_waitcnt lgkmcnt(0)")
        if st + 1 < NST:
            k("s_waitcnt vmcnt(%d)" % (11 if st + 2 < NST else 0))
            k("s_barrier")
            reads(st + 1, 0)
        m = mlist(1)
        if st + 3 < NST:
            dma(st + 3, m)
        for x in m:
            k(x)
    k("s_nop 7")
    k("s_nop 7")
    for i in range(7):
        for j in range(4):
            a = acc[i][j]
            sc = vsc6[j] if i == 6 else (vri[j] if i & 1 else vnri[j])
            for r in range(4):
                k("v_fma_f32 v%d, -v%d, v%d, v%d" % (a + r, vmb[j], vcs[i] + r, a + r))
                k("v_mul_f32 v%d, v%d, v%d" % (a + r, a + r, sc))
    k("s_barrier")
    vW, vR = voffW[0], voffW[1]
    k("v_lshlrev_b32 v%d, 4, v%d" % (L["t0"], L["lane"]))
    k("s_lshl_b32 s%d, s%d, 11" % (s_t0, s_w))
    k("v_add_u32 v%d, s%d, v%d" % (vW, s_t0, L["t0"]))
    k("s_xor_b32 s%d, s%d, 2" % (s_t0, s_w))
    k("s_lshl_b32 s%d, s%d, 11" % (s_t0, s_t0))
    k("v_add_u32 v%d, s%d, v%d" % (vR, s_t0, L["t0"]))
    k("ds_write_b128 v%d, %s" % (vW, vr(acc[6][2], 4)))
    k("ds_write_b128 v%d, %s offset:1024" % (vW, vr(acc[6][3], 4)))
    k("s_waitcnt lgkmcnt(0)")
    k("s_barrier")
    k("ds_read_b128 %s, v%d" % (vr(acc[6][2], 4), vR))
    k("ds_read_b128 %s, v%d offset:1024" % (vr(acc[6][3], 4), vR))
    vO = [voffW[2 + j] for j in range(4)]
    for j in range(4):
        k("s_lshl_b32 s%d, s%d, 1" % (s_t0, s_wf))
        k("s_add_u32 s%d, s%d, %d" % (s_t0, s_t0, j))
        k("s_and_b32 s%d, s%d, 3" % (s_t0, s_t0))
        k("s_lshl_b32 s%d, s%d, 4" % (s_t0, s_t0))
        k("s_lshl_b32 s%d, s%d, 7" % (s_t1, s_tb))
        k("s_add_u32 s%d, s%d, s%d" % (s_t0, s_t0, s_t1))
        k("s_lshl_b32 s%d, s%d, 6" % (s_t1, s_wt))
        k("s_add_u32 s%d, s%d, s%d" % (s_t0, s_t0, s_t1))
        k("v_add_u32 v%d, s%d, v%d" % (L["t0"], s_t0, L["c"]))
        k("v_mul_u32_u24 v%d, 3456, v%d" % (L["t0"], L["t0"]))
        k("v_lshl_add_u32 v%d, v%d, 3, v%d" % (vO[j], L["g"], L["t0"]))
    k("s_lshl_b32 s%d, s%d, 6" % (s_t0, s_wf))
    k("s_add_u32 s%d, s%d, s%d" % (s_t0, s_t0, s_f0))
    k("s_lshl_b32 s%d, s%d, 1" % (s_t0, s_t0))
    k("s_add_u32 s%d, s%d, 48" % (s_t1, s_f0))
    k("s_lshl_b32 s%d, s%d, 1" % (s_t1, s_t1))

    def gate(gr, ur, p):
        for r in range(4):
            k("v_exp_f32 v%d, v%d" % (gr + r, gr + r))
        for r in range(4):
            k("v_add_f32 v%d, 1.0, v%d" % (gr + r, gr + r))
        for r in range(4):
            k("v_rcp_f32 v%d, v%d" % (gr + r, gr + r))
        for r in range(4):
            k("v_mul_f32 v%d, v%d, v%d" % (ur + r, ur + r, gr + r))
        k("v_cvt_pk_bf16_f32 v%d, v%d, v%d" % (p, ur, ur + 1))
        k("v_cvt_pk_bf16_f32 v%d, v%d, v%d" % (p + 1, ur + 2, ur + 3))

    Lskip = k.lab("skip")
    k("s_cmp_lt_u32 s%d, 15" % s_fb)
    k("s_cselect_b32 s%d, 0, s%d" % (s_t2, s_wf))
    k("s_cmp_eq_u32 s%d, 0" % s_t2)
    k("s_cbranch_scc0 %s" % Lskip)
    for pp in range(3):
        for j in range(4):
            g_, u_ = acc[2 * pp][j], acc[2 * pp + 1][j]
            gate(g_, u_, g_)
            k("buffer_store_dwordx2 %s, v%d, s[%d:%d], s%d offen offset:%d" % (vr(g_, 2), vO[j], SRD_C, SRD_C + 3, s_t0, 32 * pp))
    k("s_cmp_lt_u32 s%d, 15" % s_fb)
    k("s_cbranch_scc0 %s" % Lskip)
    k("s_waitcnt lgkmcnt(0)")
    for j in range(2):
        own, rcv = acc[6][j], acc[6][2 + j]
        g_, u_ = tmp[2], tmp[3]
        for r in range(4):
            k("v_cndmask_b32 v%d, v%d, v%d, s[%d:%d]" % (g_ + r, own + r, rcv + r, s_msk, s_msk + 1))
            k("v_cndmask_b32 v%d, v%d, v%d, s[%d:%d]" % (u_ + r, rcv + r, own + r, s_msk, s_msk + 1))
        gate(g_, u_, own)
        k("buffer_store_dwordx2 %s, v%d, s[%d:%d], s%d offen" % (vr(own, 2), vO[j], SRD_C, SRD_C + 3, s_t1))
    k.place(Lskip)
    k.place(Lend)
    k("s_endpgm")
    return k.text(V.hi, A.hi)


def main():
    hdr = open(os.path.join(os.path.dirname(os.path.abspath(__file__)), "..", "cdna_kernels", NAME + ".s.ref")).read().split("\n")
    head = [l for l in hdr if l.startswith(";") and "@launch" not in l and "Override" not in l and "grid=ceil" not in l]
    out = "\n".join(head) + "\n"
    out += "; @launch kernel=k1_kernel grid=(512,1,1) block=(128,1,1) lds=%d\n" % (2 * WREG)
    out += "; @launch kernel=k2_kernel grid=(256,1,1) block=(256,1,1) lds=%d\n" % (4 * WREG)
    out += "; @launch kernel=k3_kernel grid=(256,1,1) block=(256,1,1) lds=%d\n" % (3 * K3_SLOT)
    out += "; @launch kernel=k4_kernel grid=(256,1,1) block=(256,1,1) lds=%d\n" % (4 * WREG)
    out += '.amdgcn_target "amdgcn-amd-amdhsa--gfx950"\n'
    out += gen_k1() + gen_k24(2) + gen_k3() + gen_k24(4)
    dst = sys.argv[1] if len(sys.argv) > 1 else os.path.join(os.path.dirname(os.path.abspath(__file__)), "..", "cdna_kernels", NAME + ".s")
    open(dst, "w").write(out)


if __name__ == "__main__":
    main()
```
